```python
import torch

def _softmax(x, axis=-1):
    return torch.softmax(x, dim=axis)
def _gelu(x):
    return torch.nn.functional.gelu(x, approximate="tanh")
def _silu(x):
    return torch.nn.functional.silu(x)
def _sigmoid(x):
    return torch.sigmoid(x)
def _layernorm(x, axis=-1, eps=1e-5):
    m = x.mean(dim=axis, keepdim=True)
    v = x.var(dim=axis, keepdim=True, unbiased=False)
    return (x - m) / torch.sqrt(v + eps)
def _scatter_add(tgt, idx, src, axis=0):
    return tgt.clone().index_add_(axis, idx, src)
def _segment_sum(src, seg, n):
    out = torch.zeros((n,) + src.shape[1:], dtype=src.dtype)
    return out.index_add_(0, seg, src)
def _pad(x, pw):
    flat = tuple(v for pair in reversed(pw) for v in pair)
    return torch.nn.functional.pad(x, flat)

kernel_name = 'gated_mix__softmax_full_mha__geglu_ffn__prompt'

def setup_inputs():

    _w = (lambda a: (lambda t: t.to(torch.bfloat16) if t.is_floating_point() else t)(torch.as_tensor(a)))
    def _A_setup():
        B, S, D = 1, 2048, 512
        return {
            "x": _w((lambda *s: torch.randn(*s, dtype=torch.bfloat16) * 0.05)(B, S, D)),
            "wqkv": _w((lambda *s: torch.randn(*s, dtype=torch.bfloat16) * 0.8)(D, 3 * D)),
            "wo": _w((lambda *s: torch.randn(*s, dtype=torch.bfloat16) * 0.05)(D, D)),
        }
    _A_in = _A_setup()

    def _B_setup():
        B, S, D, F = 1, 2048, 512, 1376
        return {
            "x": _w((lambda *s: torch.randn(*s, dtype=torch.bfloat16) * 0.05)(B, S, D)),
            "w_gate": _w((lambda *s: torch.randn(*s, dtype=torch.bfloat16) * 0.1)(D, F)),
            "w_up": _w((lambda *s: torch.randn(*s, dtype=torch.bfloat16) * 0.1)(D, F)),
            "w_down": _w((lambda *s: torch.randn(*s, dtype=torch.bfloat16) * 0.1)(F, D)),
        }
    _B_in = _B_setup()

    return {
        "A_x": _A_in["x"],
        "A_wqkv": _A_in["wqkv"],
        "A_wo": _A_in["wo"],
        "B_x": _B_in["x"],
        "B_w_gate": _B_in["w_gate"],
        "B_w_up": _B_in["w_up"],
        "B_w_down": _B_in["w_down"],
        "gate_w": _w((lambda *s: torch.randn(*s, dtype=torch.bfloat16) * 0.05)(512) * 16.0),
    }

def reference(A_x, A_wqkv, A_wo, B_x, B_w_gate, B_w_up, B_w_down, gate_w):
    def _A_ref(x, wqkv, wo):
        B, S, D = x.shape
        H = 32; Dh = D // H
        qkv = (lambda x, *d: x.permute(*d))((x @ wqkv).reshape(B, S, 3, H, Dh), 2, 0, 3, 1, 4)
        q, k, v = qkv[0], qkv[1], qkv[2]
        scale = Dh ** -0.5
        scores = torch.einsum("bhqd,bhkd->bhqk", q, k) * scale
        p = _softmax(scores, axis=-1)
        o = torch.einsum("bhqk,bhkd->bhqd", p, v)
        return (lambda x, *d: x.permute(*d))(o, 0, 2, 1, 3).reshape(B, S, D) @ wo

    def _B_ref(x, w_gate, w_up, w_down):
        return (_gelu(x @ w_gate) * (x @ w_up)) @ w_down

    x = A_x
    g = _sigmoid((x * gate_w).sum(-1, keepdims=True))
    a = _A_ref(x, A_wqkv, A_wo)
    b = _B_ref(x, B_w_gate, B_w_up, B_w_down)
    return g * a + (1 - g) * b
```

```python
import re
class Asm:
    def __init__(self):
        self.L = []
    def __call__(self, s):
        for line in s.split("\n"):
            line = line.strip()
            if line:
                self.L.append(line)
    def label(self, name):
        self.L.append(name + ":")
    def text(self):
        out = []
        for l in self.L:
            if l.endswith(":") or l.startswith("."):
                out.append(l)
            else:
                out.append("    " + l)
        return "\n".join(out) + "\n"

def vr(a, n=1):
    return f"v{a}" if n == 1 else f"v[{a}:{a+n-1}]"
def sr(a, n=1):
    return f"s{a}" if n == 1 else f"s[{a}:{a+n-1}]"
def mfma(d, a, b, c=None):
    cs = vr(d, 16) if c is None else (c if isinstance(c, str) else vr(c, 16))
    return f"v_mfma_f32_32x32x16_bf16 {vr(d,16)}, {vr(a,4)}, {vr(b,4)}, {cs}"
def smfmac(d, a, b, idx):
    return f"v_smfmac_f32_32x32x32_bf16 {vr(d,16)}, {vr(a,4)}, {vr(b,8)}, v{idx}"

_reg = re.compile(r"\b([vsa])(\d+)\b|\b([vsa])\[(\d+):(\d+)\]|\b(vcc|exec|m0|scc)\b")
def regs(tok):
    out = set()
    for m in _reg.finditer(tok):
        if m.group(1):
            out.add((m.group(1), int(m.group(2))))
        elif m.group(3):
            for i in range(int(m.group(4)), int(m.group(5)) + 1):
                out.add((m.group(3), i))
        else:
            out.add((m.group(6), 0))
    return out
TRANS = ("v_exp_f32", "v_log_f32", "v_rcp_f32", "v_rsq_f32", "v_sqrt_f32", "v_sin_f32", "v_cos_f32")
class I:
    def __init__(self, line):
        self.line = line
        line = line.split(";")[0].strip()
        p = line.split(None, 1)
        self.op = p[0]
        ops = [o.strip() for o in p[1].split(",")] if len(p) > 1 else []
        self.ops = ops
        op = self.op
        self.mfma = op.startswith("v_mfma") or op.startswith("v_smfmac")
        self.smf = op.startswith("v_smfmac")
        self.valu = op.startswith("v_") and not self.mfma
        self.salu = op.startswith("s_")
        self.ds = op.startswith("ds_")
        self.vmem = op.startswith("buffer_") or op.startswith("global_")
        self.trans = any(op.startswith(t) for t in TRANS)
        self.states = 1
        if op == "s_nop":
            self.states = int(ops[0]) + 1
        self.w = set(); self.r = set(); self.srcC = set(); self.AB = set(); self.stdata = set()
        lds = " lds" in line
        self.ldsdma = self.vmem and lds
        if self.mfma:
            self.w = regs(ops[0]); self.AB = regs(ops[1]) | regs(ops[2])
            if self.smf:
                self.srcC = regs(ops[0]); self.AB |= regs(ops[3].split()[0])
            else:
                self.srcC = regs(ops[3].split()[0])
            self.r = self.AB | self.srcC
        elif self.valu:
            if op.startswith("v_cmp"):
                self.w = regs(ops[0]); self.r = set().union(*[regs(o) for o in ops[1:]])
            elif op.startswith("v_permlane"):
                self.w = regs(ops[0]) | regs(ops[1]); self.r = set(self.w)
            elif op.startswith("v_nop"):
                pass
            else:
                self.w = regs(ops[0]); self.r = set().union(*[regs(o) for o in ops[1:]]) if len(ops) > 1 else set()
                if op.startswith("v_fmac") or op.startswith("v_dot2c"):
                    self.r |= self.w
        elif self.ds:
            if op.startswith("ds_read"):
                self.w = regs(ops[0]); self.r = regs(ops[1])
            else:
                self.r = set().union(*[regs(o) for o in ops]); self.stdata = regs(ops[1])
        elif self.vmem:
            if "load" in op and not lds:
                self.w = regs(ops[0]); self.r = set().union(*[regs(o) for o in ops[1:]])
            else:
                self.r = set().union(*[regs(o) for o in ops])
                if "store" in op:
                    self.stdata = regs(ops[0]) if op.startswith("buffer") else regs(ops[1])
            if lds: self.r.add(("m0", 0))
        elif self.salu:
            if op.startswith("s_cmp") or op.startswith("s_cbranch") or op in ("s_branch", "s_waitcnt", "s_barrier", "s_nop", "s_endpgm", "s_setprio", "s_sleep"):
                self.r = set().union(*[regs(o) for o in ops]) if ops else set()
            else:
                self.w = regs(ops[0]); self.r = set().union(*[regs(o) for o in ops[1:]]) if len(ops) > 1 else set()
def isv(s): return {x for x in s if x[0] in "va" and len(x[0]) == 1}
def iss(s): return {x for x in s if x[0] == "s" or x[0] == "vcc"}
def check_seq(seq, where=""):
    errs = []
    for j, b in enumerate(seq):
        dist = 0
        for i in range(j - 1, max(-1, j - 24), -1):
            a = seq[i]
            need = 0
            if a.mfma:
                if b.mfma:
                    if a.w & b.AB: need = 12
                    elif a.w & b.srcC and a.w != b.srcC: need = 10
                    elif a.w & b.w and not (a.w & b.srcC): need = 0
                elif (b.valu or b.vmem or b.ds) and (a.w & (b.r | b.w)): need = 12
                if b.valu and (a.srcC & b.w): need = max(need, 7)
            if a.valu:
                if b.mfma and (isv(a.w) & b.r): need = max(need, 2)
                if a.trans and b.valu and not b.trans and (a.w & b.r): need = max(need, 1)
                if b.op.startswith("v_permlane") and (isv(a.w) & b.r): need = max(need, 2)
                if (b.op.startswith("v_readfirstlane") or b.op.startswith("v_readlane")) and (isv(a.w) & b.r): need = max(need, 1)
                if b.vmem and (iss(a.w) & b.r): need = max(need, 5)
                if b.valu and (iss(a.w) & b.r): need = max(need, 2)
                if "dpp" in b.line and (isv(a.w) & b.r): need = max(need, 2)
            if a.salu and ("m0", 0) in a.w and b.ldsdma: need = max(need, 1)
            if (a.vmem or a.ds) and len(a.stdata) > 2 and b.valu and (a.stdata & b.w): need = max(need, 2)
            if dist < need:
                errs.append(f"{where} hazard: '{a.line}' -> '{b.line}' dist {dist} < {need}")
            dist += a.states
            if dist >= 20: break
    return errs
def check(lines):
    ins = []; labels = {}
    for l in lines:
        if l.endswith(":"):
            labels[l[:-1]] = len(ins)
        elif l.startswith(".") or l.startswith(";"):
            continue
        else:
            ins.append(I(l))
    errs = []
    seg = []
    for x in ins:
        seg.append(x)
        if x.op in ("s_branch", "s_endpgm"):
            errs += check_seq(seg); seg = []
    errs += check_seq(seg)
    for k, x in enumerate(ins):
        if x.op.startswith("s_cbranch") or x.op == "s_branch":
            t = labels.get(x.ops[0])
            if t is None: continue
            lo = k
            while lo > 0 and k - lo < 24 and ins[lo - 1].op not in ("s_branch", "s_endpgm"): lo -= 1
            hi = t
            while hi < len(ins) and hi - t < 24 and (hi == t or ins[hi - 1].op not in ("s_branch", "s_endpgm")): hi += 1
            seq = ins[lo:k + 1] + ins[t:hi]
            n0 = k + 1 - lo
            for e in check_seq(seq, f"[edge {x.ops[0]}]"):
                errs.append(e)
    return sorted(set(errs))
```

```python
import sys, struct
from asmlib import *
NAME = "gated_mix__softmax_full_mha__geglu_ffn__prompt"
WS_QF = 0; WS_KV = 2 << 20; WS_HF = 6 << 20; WS_WD = 12 << 20; WS_WO = 14 << 20
WS_OF = 16 << 20; WS_BF = 18 << 20; WS_G = 20 << 20; WS_SIZE = 24 << 20
KS2 = 86
def f2u(x): return struct.unpack("<I", struct.pack("<f", x))[0]
LOG2E = 1.4426950408889634
QSCALE = f2u(0.25 * LOG2E)

def srd(a, d, p, n):
    a(f"s_mov_b32 s{d}, s{p}\ns_mov_b32 s{d+1}, s{p+1}\ns_mov_b32 s{d+2}, {n}\ns_mov_b32 s{d+3}, 0x00020000")

def interleave(a, mf, fill):
    for i, m in enumerate(mf):
        a(m)
        for f in fill.get(i, []):
            a(f)

XSLOT = 16384; WBASE = 49152; SCR = 151552; GWL = 159744; K1_LDS = 160768
def k1():
    a = Asm()
    ACC = 0; XF = 160; WF = 176
    vXa = 216; vXc = 220; vWl = 224; vWl2 = 225; vWc = 226; vWc2 = 227; vGa = 228
    vXd = 230; vWd = 231
    vL = 236; vN = 237; vH = 238; vR = 239; vC = 240; vQ4 = 241; vTr = 242; vT = 243; vT2 = 244; vLin = 245; vT3 = 246
    sW = 24; sTT = 25; sCT = 26; sTH = 27; sCH = 28; sCNT = 29
    sWrd = 30; sWwr = 31; sXrd = 32; sXwr = 33; sWso = 34; sXso = 35; sT = 36; sT2 = 37; sT3 = 38; sWend = 39
    a("s_cmp_ge_u32 s2, 256\ns_cbranch_scc1 K1_END")
    a("s_load_dwordx4 s[40:43], s[0:1], 0\ns_load_dwordx2 s[44:45], s[0:1], 16\ns_load_dwordx4 s[48:51], s[0:1], 32")
    a("s_load_dwordx4 s[52:55], s[0:1], 48\ns_load_dwordx2 s[56:57], s[0:1], 80")
    a(f"v_lshrrev_b32 v1, 6, v0\nv_and_b32 v{vL}, 63, v0")
    a(f"v_readfirstlane_b32 s{sW}, v1")
    a(f"s_and_b32 s3, s2, 7\ns_lshr_b32 s{sT}, s2, 3")
    a(f"s_and_b32 s{sTT}, s3, 1\ns_lshl_b32 s{sTT}, s{sTT}, 3\ns_and_b32 s{sT2}, s{sT}, 7\ns_add_u32 s{sTT}, s{sTT}, s{sT2}")
    a(f"s_lshr_b32 s{sCT}, s3, 1\ns_lshl_b32 s{sCT}, s{sCT}, 2\ns_lshr_b32 s{sT2}, s{sT}, 3\ns_add_u32 s{sCT}, s{sCT}, s{sT2}")
    a(f"s_and_b32 s{sTH}, s{sW}, 1\ns_lshr_b32 s{sCH}, s{sW}, 1")
    a(f"v_and_b32 v{vN}, 31, v{vL}\nv_lshrrev_b32 v{vH}, 5, v{vL}\nv_bfe_u32 v{vR}, v{vL}, 2, 2\nv_and_b32 v{vC}, 3, v{vL}\nv_lshrrev_b32 v{vQ4}, 4, v{vL}")
    a(f"v_lshlrev_b32 v{vLin}, 4, v{vL}")
    a(f"s_lshl_b32 s{sT}, s{sTH}, 2")
    a(f"v_add_u32 v{vT}, s{sT}, v{vQ4}\nv_and_b32 v{vT2}, 7, v{vL}\nv_xor_b32 v{vT}, v{vT}, v{vT2}\nv_lshlrev_b32 v{vT}, 4, v{vT}")
    a(f"v_lshrrev_b32 v{vT2}, 3, v{vL}\nv_lshl_add_u32 v{vXd}, v{vT2}, 10, v{vT}")
    a(f"v_lshl_add_u32 v{vT}, v{vH}, 2, v{vR}\nv_lshlrev_b32 v{vT}, 10, v{vT}\nv_and_b32 v{vT2}, 1, v{vQ4}")
    a(f"v_lshl_add_u32 v{vT}, v{vT2}, 6, v{vT}\nv_lshl_add_u32 v{vT3}, v{vC}, 4, v{vT}")
    a(f"v_lshlrev_b32 v{vTr}, 6, v{vR}\nv_lshl_add_u32 v{vTr}, v{vT2}, 5, v{vTr}\nv_lshl_add_u32 v{vTr}, v{vC}, 3, v{vTr}")
    sU = 58; sKS = 59; sCP = 60; sRso = 61; sRdst = 62; sRstr = 63
    a(f"s_lshl_b32 s{sU}, s2, 2\ns_add_u32 s{sU}, s{sU}, s{sW}\ns_lshr_b32 s{sKS}, s{sU}, 3\ns_and_b32 s{sCP}, s{sU}, 7")
    a("s_waitcnt lgkmcnt(0)")
    srd(a, 4, 40, 2048 * 1024)
    srd(a, 12, 56, WS_SIZE)
    a(f"s_cmp_lt_u32 s{sKS}, {KS2}")
    a(f"s_cselect_b32 s16, s52, s44\ns_cselect_b32 s17, s53, s45\ns_mov_b32 s18, {512*1024}\ns_cmov_b32 s18, {1376*1024}\ns_mov_b32 s19, 0x00020000")
    a(f"s_cselect_b32 s{sT}, 0, {KS2}\ns_mov_b32 s{sRstr}, {32*1024}\ns_cmov_b32 s{sRstr}, {KS2*1024}\ns_mov_b32 s{sRdst}, {WS_WO}\ns_cmov_b32 s{sRdst}, {WS_WD}")
    a(f"s_sub_u32 s{sKS}, s{sKS}, s{sT}")
    a(f"s_lshl_b32 s{sRso}, s{sKS}, 14\ns_lshl_b32 s{sT}, s{sCP}, 7\ns_add_u32 s{sRso}, s{sRso}, s{sT}")
    a(f"s_lshl_b32 s{sT}, s{sCP}, 1\ns_mul_i32 s{sT}, s{sT}, s{sRstr}\ns_add_u32 s{sRdst}, s{sRdst}, s{sT}\ns_lshl_b32 s{sT}, s{sKS}, 10\ns_add_u32 s{sRdst}, s{sRdst}, s{sT}")
    a(f"s_lshl_b32 s{sXwr}, s{sW}, 10")
    a(f"s_lshl_b32 s{sXso}, s{sTT}, 17\ns_lshl_b32 s{sT}, s{sW}, 13\ns_add_u32 s{sXso}, s{sXso}, s{sT}")
    a(f"s_cmp_ge_u32 s{sU}, 944\ns_cbranch_scc1 K1_NOREP0")
    a(f"s_lshl_b32 s{sT}, s{sW}, 11\ns_add_u32 m0, s{sT}, {SCR}\ns_add_u32 s{sT2}, s{sRso}, 8192")
    a(f"buffer_load_dwordx4 v{vT3}, s[16:19], s{sRso} offen lds")
    a(f"s_add_u32 m0, s{sT}, {SCR+1024}\ns_nop 0")
    a(f"buffer_load_dwordx4 v{vT3}, s[16:19], s{sT2} offen lds")
    a.label("K1_NOREP0")
    def xdma(i, first_of_slot_adv=False):
        return [f"s_add_u32 m0, s{sXwr}, {i*4096}", f"s_add_u32 s{sT}, s{sXso}, {i*32768}",
                f"buffer_load_dwordx4 v{vXd}, s[4:7], s{sT} offen lds"]
    def xadv():
        return [f"s_add_u32 s{sXwr}, s{sXwr}, {XSLOT}", f"s_cmp_ge_u32 s{sXwr}, {3*XSLOT}",
                f"s_cselect_b32 s{sT}, {3*XSLOT}, 0", f"s_sub_u32 s{sXwr}, s{sXwr}, s{sT}", f"s_add_u32 s{sXso}, s{sXso}, 128"]
    for i in range(4):
        for s in xdma(i): a(s)
    for s in xadv(): a(s)
    a(f"s_cmp_ge_u32 s{sCT}, 5\ns_cbranch_scc1 K1_G1")

    def body(var):
        g1 = var == 'G1'
        nW = 4 if g1 else 5
        nB = 4 if g1 else 5
        WSLOT = 16384 if g1 else 20480
        stride = 2752 if g1 else 3072
        RG = 2048 if g1 else 2560
        def wdma(i):
            if g1:
                return [f"s_add_u32 m0, s{sWwr}, {i*4096}", f"s_add_u32 s{sT}, s{sWso}, {i*8*stride}",
                        f"buffer_load_dwordx4 v{vWd}, s[8:11], s{sT} offen lds"]
            return [f"s_add_u32 m0, s{sWwr}, {i*1024}", f"s_nop 0",
                    f"buffer_load_dwordx4 v{vWd+i}, s[8:11], s{sWso} offen lds"]
        def wadv():
            return [f"s_add_u32 s{sWwr}, s{sWwr}, {WSLOT}", f"s_cmp_ge_u32 s{sWwr}, s{sWend}",
                    f"s_cselect_b32 s{sT}, {5*WSLOT}, 0", f"s_sub_u32 s{sWwr}, s{sWwr}, s{sT}", f"s_add_u32 s{sWso}, s{sWso}, {32*stride}"]
        if g1:
            a(f"s_cmp_eq_u32 s{sTH}, 0\ns_cselect_b32 s8, s48, s50\ns_cselect_b32 s9, s49, s51\ns_mov_b32 s10, {512*2752}\ns_mov_b32 s11, 0x00020000")
            a(f"s_mov_b32 s{sT}, 2752\nv_mul_lo_u32 v{vT}, v{vR}, s{sT}\nv_lshl_add_u32 v{vT}, v{vQ4}, 6, v{vT}\nv_lshl_add_u32 v{vWd}, v{vC}, 4, v{vT}")
            a(f"s_lshl_b32 s{sWwr}, s{sCH}, 11\ns_lshl_b32 s{sT}, s{sTH}, 10\ns_add_u32 s{sWwr}, s{sWwr}, s{sT}\ns_add_u32 s{sWwr}, s{sWwr}, {WBASE}")
            a(f"s_mul_i32 s{sWso}, s{sCH}, {4*2752}\ns_sub_u32 s{sT}, s{sCT}, 5\ns_lshl_b32 s{sT}, s{sT}, 8\ns_add_u32 s{sWso}, s{sWso}, s{sT}")
        else:
            srd(a, 8, 42, 512 * 3072)
            a(f"s_mov_b32 s{sT}, 3072\nv_mul_lo_u32 v{vT}, v{vR}, s{sT}\nv_lshl_add_u32 v{vT}, v{vQ4}, 6, v{vT}\nv_lshl_add_u32 v{vWd}, v{vC}, 4, v{vT}")
            a(f"v_add_u32 v{vWd+1}, 256, v{vWd}\ns_mov_b32 s{sT}, 11648\nv_mul_lo_u32 v{vT}, v{vH}, s{sT}\nv_add_u32 v{vWd+2}, 512, v{vWd}\nv_add_u32 v{vWd+2}, v{vWd+2}, v{vT}")
            a(f"v_add_u32 v{vWd+3}, {768+11648}, v{vWd}\nv_add_u32 v{vWd+4}, {1024+11648}, v{vWd}")
            a(f"s_mul_i32 s{sWwr}, s{sW}, 5120\ns_add_u32 s{sWwr}, s{sWwr}, {WBASE}")
            if var == 'GV':
                a(f"s_mul_i32 s{sWso}, s{sW}, {8*3072}\ns_add_u32 s{sWso}, s{sWso}, 2432")
            else:
                a(f"s_mul_i32 s{sWso}, s{sW}, {8*3072}\ns_mul_i32 s{sT}, s{sCT}, 640\ns_add_u32 s{sWso}, s{sWso}, s{sT}")
        a(f"s_mov_b32 s{sWend}, {WBASE + 5*WSLOT}")
        extra = 0
        if var == 'GV':
            srd(a, 20, 54, 1024)
            a(f"s_mov_b32 m0, {GWL}\ns_nop 0\nbuffer_load_dwordx4 v{vLin}, s[20:23], 0 offen lds")
        for st in range(2):
            for i in range(nW):
                for s in wdma(i): a(s)
            for s in wadv(): a(s)
        for i in range(4):
            for s in xdma(i): a(s)
        for s in xadv(): a(s)
        for i in range(nW):
            for s in wdma(i): a(s)
        for s in wadv(): a(s)
        for s in wdma(0): a(s)
        npro = 4 + 3 * nW + 4 + 1 + (1 if var == 'GV' else 0)
        a(f"s_lshl_b32 s{sT}, s{sTH}, 13\nv_lshl_add_u32 v{vT}, v{vN}, 7, s{sT}\nv_bfe_u32 v{vT2}, v{vN}, 1, 3\nv_xor_b32 v{vT2}, v{vT2}, v{vH}")
        for ks in range(4):
            a(f"v_xor_b32 v{vXa+ks}, {2*ks}, v{vT2}\nv_lshl_add_u32 v{vXa+ks}, v{vXa+ks}, 4, v{vT}\nv_mov_b32 v{vXc+ks}, v{vXa+ks}")
        a(f"s_mov_b32 s{sT}, {2*RG}\nv_mul_lo_u32 v{vT}, v{vH}, s{sT}\nv_add_u32 v{vT}, v{vT}, v{vTr}")
        if g1:
            a(f"s_lshl_b32 s{sT}, s{sCH}, 9\nv_add_u32 v{vWl}, s{sT}, v{vT}")
        elif var == 'QK':
            a(f"s_mul_i32 s{sT}, s{sCH}, 1280\nv_add_u32 v{vWl}, s{sT}, v{vT}")
        else:
            a(f"s_lshl_b32 s{sT}, s{sCH}, 8\nv_add_u32 v{vWl2}, s{sT}, v{vT}")
            a(f"s_lshl_b32 s{sT}, s{sCH}, 10\ns_add_u32 s{sT}, s{sT}, 512\nv_add_u32 v{vWl}, s{sT}, v{vT}")
            a(f"v_add_u32 v{vWc2}, {WBASE}, v{vWl2}")
            if var == 'GV':
                a(f"v_lshlrev_b32 v{vGa}, 4, v{vH}\nv_add_u32 v{vGa}, {GWL}, v{vGa}")
        a(f"v_add_u32 v{vWc}, {WBASE}, v{vWl}")
        a(f"s_mov_b32 s{sWrd}, {WBASE+WSLOT}\ns_mov_b32 s{sXrd}, {XSLOT}\ns_mov_b32 s{sCNT}, 8")
        for r in range(nB * 32):
            a(f"v_mov_b32 v{ACC+r}, 0")
        a(f"s_cmp_ge_u32 s{sU}, 944\ns_cbranch_scc1 K1_NOREP_{var}")
        a(f"s_lshl_b32 s{sT}, s{sW}, 11\ns_add_u32 s{sT}, s{sT}, {SCR}\nv_lshl_add_u32 v{vT}, v{vH}, 9, v{vTr}\nv_add_u32 v{vT}, s{sT}, v{vT}")
        a(f"s_waitcnt vmcnt({npro})")
        for blk in range(2):
            for q in range(2):
                a(f"ds_read_b64_tr_b16 {vr(WF+20+4*blk+2*q,2)}, v{vT} offset:{q*1024+blk*256}")
        a(f"s_add_u32 s{sT2}, s{sRdst}, s{sRstr}\ns_waitcnt lgkmcnt(0)")
        a(f"buffer_store_dwordx4 {vr(WF+20,4)}, v{vLin}, s[12:15], s{sRdst} offen")
        a(f"buffer_store_dwordx4 {vr(WF+24,4)}, v{vLin}, s[12:15], s{sT2} offen")
        a.label(f"K1_NOREP_{var}")
        def xread(buf, ks):
            return [f"ds_read_b128 {vr(XF+buf*8+4*t,4)}, v{vXc+ks} offset:{t*4096}" for t in range(2)]
        def wread(buf, sp, ks):
            L = []
            for i in range(nB):
                d = WF + buf * 20 + 4 * i
                if var == 'GV' and i == 0:
                    L.append(f"ds_read_b128 {vr(d,4)}, v{vGa} offset:{ks*32}")
                    continue
                for q in range(2):
                    if g1: ad, off = vWc, sp * 4 * RG + q * RG + (i & 1) * 256 + (i >> 1) * 1024
                    elif var == 'QK': ad, off = vWc, sp * 4 * RG + q * RG + i * 256
                    elif i == 0: ad, off = vWc2, sp * 4 * RG + q * RG
                    else: ad, off = vWc, sp * 4 * RG + q * RG + (i - 1) * 256
                    L.append(f"ds_read_b64_tr_b16 {vr(d+2*q,2)}, v{ad} offset:{off}")
            return L
        def mfs(buf):
            L = []
            for i in range(nB):
                for t in range(2):
                    acc = ACC + (i * 2 + t) * 16
                    w = WF + buf * 20 + 4 * i; x = XF + buf * 8 + 4 * t
                    swap = var in ('KV', 'GV') and i > 0
                    L.append(mfma(acc, x, w) if swap else mfma(acc, w, x))
            return L
        def wrdadv():
            L = [f"v_add_u32 v{vWc}, s{sWrd}, v{vWl}"]
            if var == 'KV': L.append(f"v_add_u32 v{vWc2}, s{sWrd}, v{vWl2}")
            L += [f"s_add_u32 s{sWrd}, s{sWrd}, {WSLOT}", f"s_cmp_ge_u32 s{sWrd}, s{sWend}",
                  f"s_cselect_b32 s{sT2}, {5*WSLOT}, 0", f"s_sub_u32 s{sWrd}, s{sWrd}, s{sT2}"]
            return L
        def xrdadv():
            L = [f"v_add_u32 v{vXc+k}, s{sXrd}, v{vXa+k}" for k in range(4)]
            L += [f"s_add_u32 s{sXrd}, s{sXrd}, {XSLOT}", f"s_cmp_ge_u32 s{sXrd}, {3*XSLOT}",
                  f"s_cselect_b32 s{sT2}, {3*XSLOT}, 0", f"s_sub_u32 s{sXrd}, s{sXrd}, s{sT2}"]
            return L
        a(f"s_waitcnt vmcnt({2*nW+4+1})\ns_barrier")
        for s in xread(0, 0) + wread(0, 0, 0): a(s)
        nM = 2 * nB
        def phase(p):
            buf = p & 1
            fill = {g: [] for g in range(nM)}
            pre = []
            if p == 1: pre = wrdadv()
            if p == 3: pre = wrdadv() + xrdadv() + ([f"v_add_u32 v{vGa}, 128, v{vGa}"] if var == 'GV' else [])
            ksn = (p + 1) & 3
            rd = xread(buf ^ 1, ksn) + wread(buf ^ 1, (p + 1) & 1, ksn)
            fill[0] += pre
            for k, r in enumerate(rd):
                fill[min(k // 2, nM - 2)].append(r)
            if p in (1, 3):
                xi = 0 if p == 1 else 2
                d = [xdma(xi), xdma(xi + 1) + (xadv() if p == 3 else []), wdma(0)]
                gaps = [2, 4, 6] if g1 else [2, 5, 8]
            else:
                d = [wdma(i) for i in range(1, nW)]
                d[-1] = d[-1] + wadv()
                gaps = [1, 3, 5] if g1 else [1, 3, 5, 7]
            for g, dd in zip(gaps, d): fill[g] += dd
            m = mfs(buf)
            a("s_waitcnt lgkmcnt(0)")
            if p in (0, 2):
                n = 2 * (nW + 2) if p == 0 else 2 * nW + 2
                fill[nM - 1] += [f"s_waitcnt vmcnt({n})", "s_barrier"]
            if p == 3:
                pass
            interleave(a, m, fill)
        a(".p2align 6")
        a.label(f"K1_LOOP_{var}")
        a(f"s_cmp_le_u32 s{sCNT}, 2\ns_cselect_b32 s{sXso}, 0x40000000, s{sXso}")
        for p in range(4): phase(p)
        a(f"s_sub_u32 s{sCNT}, s{sCNT}, 1\ns_cmp_lg_u32 s{sCNT}, 0\ns_cbranch_scc1 K1_LOOP_{var}")
        a("s_waitcnt lgkmcnt(0)\ns_nop 7")
        sTB = 64; sB = 65; sB2 = 66; sSC = 67; sHS = 68; sTS = 69
        a(f"s_lshl_b32 s{sTB}, s{sTT}, 2\ns_lshl_b32 s{sT}, s{sTH}, 1\ns_add_u32 s{sTB}, s{sTB}, s{sT}")
        TMP = XF
        def qk_block(i, gbexpr):
            a(gbexpr)
            a(f"s_cmp_lt_u32 s{sT3}, 16")
            a(f"s_cselect_b32 s{sSC}, {QSCALE}, 1.0\ns_cselect_b32 s{sHS}, 16, 17\ns_cselect_b32 s{sTS}, 10, 11\ns_cselect_b32 s{sB}, {WS_QF}, {WS_KV}")
            a(f"s_cselect_b64 vcc, -1, 0")
            a(f"s_and_b32 s{sT3}, s{sT3}, 15\ns_lshl_b32 s{sT3}, s{sT3}, 1\ns_lshl_b32 s{sT3}, s{sT3}, s{sHS}\ns_add_u32 s{sB}, s{sB}, s{sT3}")
            a(f"s_lshl_b32 s{sT3}, s{sTB}, s{sTS}\ns_add_u32 s{sB}, s{sB}, s{sT3}")
            a(f"s_lshl_b32 s{sHS}, 1, s{sHS}\ns_lshl_b32 s{sTS}, 1, s{sTS}")
            a(f"v_cndmask_b32 v{vT}, v{vT2}, v{vLin}, vcc\nv_mov_b32 v{vT3}, s{sSC}\nv_mov_b32 v{vT3+1}, s{sSC}")
            for t in range(2):
                acc = ACC + (i * 2 + t) * 16
                o = TMP + ((i * 2 + t) % 4) * 8
                for r in range(0, 16, 2):
                    a(f"v_pk_mul_f32 {vr(acc+r,2)}, {vr(acc+r,2)}, {vr(vT3,2)}")
                for r in range(8):
                    a(f"v_cvt_pk_bf16_f32 v{o+r}, v{acc+2*r}, v{acc+2*r+1}")
                a(f"s_add_u32 s{sB2}, s{sB}, s{sHS}")
                a(f"buffer_store_dwordx4 {vr(o,4)}, v{vT}, s[12:15], s{sB} offen")
                a(f"buffer_store_dwordx4 {vr(o+4,4)}, v{vT}, s[12:15], s{sB2} offen")
                if t == 0: a(f"s_add_u32 s{sB}, s{sB}, s{sTS}")
        if var in ('QK', 'KV'):
            a(f"v_and_b32 v{vT2}, 0x33, v{vL}\nv_bfe_u32 v{vT}, v{vL}, 2, 1\nv_lshl_add_u32 v{vT2}, v{vT}, 3, v{vT2}")
            a(f"v_bfe_u32 v{vT}, v{vL}, 3, 1\nv_lshl_add_u32 v{vT2}, v{vT}, 2, v{vT2}\nv_lshlrev_b32 v{vT2}, 4, v{vT2}")
        if var == 'QK':
            for i in range(5):
                qk_block(i, f"s_mul_i32 s{sT3}, s{sCT}, 10\ns_mul_i32 s{sT}, s{sCH}, 5\ns_add_u32 s{sT3}, s{sT3}, s{sT}\ns_add_u32 s{sT3}, s{sT3}, {i}")
        if var == 'KV':
            qk_block(0, f"s_add_u32 s{sT3}, s{sCH}, 30")
        if var == 'GV':
            a(f"s_cmp_lg_u32 s{sCH}, 0\ns_cbranch_scc1 K1_NOG")
            a(f"s_lshl_b32 s{sB}, s{sTB}, 7\ns_add_u32 s{sB}, s{sB}, {WS_G}\nv_lshlrev_b32 v{vT}, 2, v{vN}")
            for t in range(2):
                acc = ACC + t * 16
                a(f"v_mul_f32 v{acc}, {hex(f2u(-LOG2E))}, v{acc}\nv_exp_f32 v{acc}, v{acc}\ns_nop 0\nv_add_f32 v{acc}, 1.0, v{acc}\nv_rcp_f32 v{acc}, v{acc}\ns_nop 0")
                a(f"buffer_store_dword v{acc}, v{vT}, s[12:15], s{sB} offen offset:{t*128}")
            a.label("K1_NOG")
        if var in ('KV', 'GV'):
            a(f"v_and_b32 v{vT}, 15, v{vL}\nv_lshlrev_b32 v{vT}, 4, v{vT}\nv_lshl_add_u32 v{vT}, v{vH}, 8, v{vT}\nv_bfe_u32 v{vT2}, v{vL}, 4, 1\nv_lshl_add_u32 v{vT}, v{vT2}, 17, v{vT}")
            a(f"s_lshl_b32 s{sB}, s{sCH}, 20\ns_lshl_b32 s{sT}, s{sTB}, 11\ns_add_u32 s{sB}, s{sB}, s{sT}")
            a(f"s_add_u32 s{sB}, s{sB}, {WS_KV + 1024 + (0 if var == 'KV' else 8*2*131072)}")
            for i in range(1, 5):
                for t in range(2):
                    acc = ACC + (i * 2 + t) * 16
                    o = TMP + ((i * 2 + t) % 4) * 8
                    for r in range(8):
                        a(f"v_cvt_pk_bf16_f32 v{o+r}, v{acc+2*r}, v{acc+2*r+1}")
                    a(f"buffer_store_dwordx4 {vr(o,4)}, v{vT}, s[12:15], s{sB} offen offset:{t*2048}")
                    a(f"buffer_store_dwordx4 {vr(o+4,4)}, v{vT}, s[12:15], s{sB} offen offset:{t*2048+512}")
                if i < 4: a(f"s_add_u32 s{sB}, s{sB}, {2*131072}")
        if g1:
            c0 = -2.0 * 0.7978845608028654 * LOG2E
            c1 = c0 * 0.044715
            C0 = 208; C1 = 210; ONE = 212
            a(f"v_mov_b32 v{C0}, {hex(f2u(c0))}\nv_mov_b32 v{C0+1}, {hex(f2u(c0))}\nv_mov_b32 v{C1}, {hex(f2u(c1))}\nv_mov_b32 v{C1+1}, {hex(f2u(c1))}")
            a(f"v_mov_b32 v{ONE}, 1.0\nv_mov_b32 v{ONE+1}, 1.0")
            a(f"s_sub_u32 s{sT3}, s{sCT}, 5\ns_lshl_b32 s{sT3}, s{sT3}, 1\ns_add_u32 s{sT3}, s{sT3}, s{sCH}\ns_lshl_b32 s{sT3}, s{sT3}, 1")
            a(f"s_mul_i32 s{sB}, s{sTB}, {KS2*1024}\ns_lshl_b32 s{sT}, s{sT3}, 11\ns_add_u32 s{sB}, s{sB}, s{sT}\ns_add_u32 s{sB}, s{sB}, {WS_HF}")
            a(f"s_add_u32 s{sB2}, s{sB}, {KS2*1024}")
            for p in range(2):
                if p == 1:
                    a(f"s_cmp_ge_u32 s{sT3}, 42\ns_cbranch_scc1 K1_END")
                for t in range(2):
                    G = ACC + (p * 2 + t) * 16; U = ACC + ((2 + p) * 2 + t) * 16
                    Z = 128 + 0
                    o = TMP + ((p * 2 + t) % 4) * 8
                    for r in range(0, 16, 2): a(f"v_pk_mul_f32 {vr(Z+r,2)}, {vr(G+r,2)}, {vr(G+r,2)}")
                    for r in range(0, 16, 2): a(f"v_pk_fma_f32 {vr(Z+r,2)}, {vr(Z+r,2)}, {vr(C1,2)}, {vr(C0,2)}")
                    for r in range(0, 16, 2): a(f"v_pk_mul_f32 {vr(Z+r,2)}, {vr(Z+r,2)}, {vr(G+r,2)}")
                    for r in range(16): a(f"v_exp_f32 v{Z+r}, v{Z+r}")
                    for r in range(0, 16, 2): a(f"v_pk_mul_f32 {vr(G+r,2)}, {vr(G+r,2)}, {vr(U+r,2)}")
                    for r in range(0, 16, 2): a(f"v_pk_add_f32 {vr(Z+r,2)}, {vr(Z+r,2)}, {vr(ONE,2)}")
                    for r in range(16): a(f"v_rcp_f32 v{Z+r}, v{Z+r}")
                    a("s_nop 0")
                    for r in range(0, 16, 2): a(f"v_pk_mul_f32 {vr(G+r,2)}, {vr(G+r,2)}, {vr(Z+r,2)}")
                    for r in range(8): a(f"v_cvt_pk_bf16_f32 v{o+r}, v{G+2*r}, v{G+2*r+1}")
                    sb = sB if t == 0 else sB2
                    a(f"buffer_store_dwordx4 {vr(o,4)}, v{vLin}, s[12:15], s{sb} offen offset:{p*2048}")
                    a(f"buffer_store_dwordx4 {vr(o+4,4)}, v{vLin}, s[12:15], s{sb} offen offset:{p*2048+1024}")
        a("s_endpgm")
    a(f"s_cmp_eq_u32 s{sCT}, 3\ns_cbranch_scc1 K1_KV\ns_cmp_eq_u32 s{sCT}, 4\ns_cbranch_scc1 K1_GV")
    body('QK')
    a.label("K1_G1"); body('G1')
    a.label("K1_KV"); body('KV')
    a.label("K1_GV"); body('GV')
    a.label("K1_END")
    a("s_endpgm")
    return a

K2_RED = 131072 + 8192
K2_LDS = K2_RED + 16384
def k2():
    a = Asm()
    O = 0; C = 16; S = [32, 48]; Q = 64; KF = 68; VLO = 72; VHI = [76, 80]; GA = 84; RING = 100
    vIdx = 132; vK = 133; vV = 134; vLin = 135; vL = 136; vT = 137; vT2 = 138; vM = 139; TMP = 140
    sW = 24; sHead = 25; sQG = 26; sT = 27; sT2 = 28; sCNT = 29; sA = 30; sB = 31; sTG = 32; sCG = 33; sBo = 34; sOo = 35
    sMask = 36
    a("s_cmp_ge_u32 s2, 256\ns_cbranch_scc1 K2_END")
    a("s_load_dwordx2 s[56:57], s[0:1], 80")
    a(f"v_lshrrev_b32 v1, 6, v0\nv_and_b32 v{vL}, 63, v0")
    a(f"v_readfirstlane_b32 s{sW}, v1")
    a(f"s_and_b32 s3, s2, 7\ns_lshr_b32 s{sT}, s2, 3\ns_and_b32 s{sT2}, s{sT}, 3\ns_lshl_b32 s{sHead}, s3, 2\ns_add_u32 s{sHead}, s{sHead}, s{sT2}\ns_lshr_b32 s{sQG}, s{sT}, 2")
    a(f"v_lshlrev_b32 v{vLin}, 4, v{vL}")
    a(f"s_lshl_b32 s{sT}, s{sQG}, 3\ns_add_u32 s{sT}, s{sT}, s{sW}")
    a(f"s_lshl_b32 s{sOo}, s{sT}, 15\ns_lshl_b32 s{sT2}, s{sHead}, 10\ns_add_u32 s{sOo}, s{sOo}, s{sT2}\ns_add_u32 s{sOo}, s{sOo}, {WS_OF}")
    a(f"s_lshl_b32 s{sT}, s{sT}, 10\ns_lshl_b32 s{sT2}, s{sHead}, 16\ns_add_u32 s{sT}, s{sT}, s{sT2}")
    a(f"s_lshl_b32 s{sA}, s{sHead}, 17\ns_lshl_b32 s{sT2}, s{sW}, 10\ns_add_u32 s{sA}, s{sA}, s{sT2}\ns_add_u32 s{sA}, s{sA}, {WS_KV}")
    a(f"s_mov_b32 m0, s{sT2}")
    a("s_waitcnt lgkmcnt(0)")
    srd(a, 12, 56, WS_SIZE)
    a(f"buffer_load_dwordx4 {vr(Q,4)}, v{vLin}, s[12:15], s{sT} offen")
    for i in range(16):
        a(f"buffer_load_dwordx4 v{vLin}, s[12:15], s{sA} offen lds")
        if i < 15:
            a(f"s_add_u32 m0, m0, 8192\ns_add_u32 s{sA}, s{sA}, 8192")
    a(f"s_and_b32 s{sT}, s{sW}, 1\ns_lshl_b32 s{sTG}, s{sHead}, 1\ns_add_u32 s{sTG}, s{sTG}, s{sT}")
    a(f"s_bfe_u32 s{sT}, s{sW}, 0x10001\ns_lshl_b32 s{sCG}, s{sQG}, 1\ns_add_u32 s{sCG}, s{sCG}, s{sT}")
    a(f"s_lshr_b32 s{sT}, s{sW}, 2\ns_mul_i32 s{sT}, s{sT}, {43*1024}")
    a(f"s_mul_i32 s{sA}, s{sCG}, {KS2*1024}\ns_add_u32 s{sA}, s{sA}, s{sT}\ns_add_u32 s{sA}, s{sA}, {WS_WD}")
    a(f"s_mul_i32 s{sB}, s{sTG}, {KS2*1024}\ns_add_u32 s{sB}, s{sB}, s{sT}\ns_add_u32 s{sB}, s{sB}, {WS_HF}")
    a(f"s_lshl_b32 s{sBo}, s{sTG}, 4\ns_add_u32 s{sBo}, s{sBo}, s{sCG}\ns_lshl_b32 s{sBo}, s{sBo}, 11\ns_add_u32 s{sBo}, s{sBo}, {WS_BF}")
    a(f"s_mov_b32 s{sMask}, 0x0000ffff\ns_mov_b32 s{sMask+1}, 0x0000ffff")
    a(f"v_mov_b32 v{vK}, v{vLin}")
    a(f"v_and_b32 v{vT}, 15, v{vL}\nv_lshrrev_b32 v{vT2}, 5, v{vL}\nv_lshlrev_b32 v{vT}, 4, v{vT}\nv_lshl_add_u32 v{vV}, v{vT2}, 8, v{vT}")
    a(f"v_mov_b32 v{vIdx}, 0xdddd")
    a(f"v_and_b32 v{vT}, 27, v{vL}\nv_cmp_eq_u32 vcc, 16, v{vT}\nv_mov_b32 v{vT2}, 0x3f803f80\nv_mov_b32 v{vT}, 0")
    a(f"v_cndmask_b32 v{VLO}, v{vT}, v{vT2}, vcc")
    for r in range(1, 12): a(f"v_mov_b32 v{VLO+r}, v{VLO}")
    def init_acc(g2):
        for r in range(16): a(f"v_mov_b32 v{O+r}, 0")
        for r in range(8, 16): a(f"v_mov_b32 v{S[1]+r}, 0")
        if g2:
            for r in range(16): a(f"v_mov_b32 v{GA+r}, 0")
    init_acc(True)
    a("s_waitcnt vmcnt(14)\ns_barrier")
    def vread(t_off, hb):
        return [f"s_mov_b64 exec, s[{sMask}:{sMask+1}]",
                f"ds_read_b128 {vr(VLO,4)}, v{vV} offset:{t_off*2048+1024}",
                f"ds_read_b128 {vr(VHI[hb],4)}, v{vV} offset:{t_off*2048+1536}",
                f"s_mov_b64 exec, -1"]
    def start(setmax):
        a(f"ds_read_b128 {vr(KF,4)}, v{vK}")
        a("s_waitcnt lgkmcnt(0)")
        if setmax:
            a(mfma(S[0], KF, Q, "0"))
            a("s_nop 11")
            a(f"v_max3_f32 v{vM}, v{S[0]}, v{S[0]+1}, v{S[0]+2}")
            for r in range(3, 15, 2): a(f"v_max3_f32 v{vM}, v{vM}, v{S[0]+r}, v{S[0]+r+1}")
            a(f"v_max_f32 v{vM}, v{vM}, v{S[0]+15}")
            setC()
        a(mfma(S[0], KF, Q, C))
        a(f"ds_read_b128 {vr(KF,4)}, v{vK} offset:2048")
        for s in vread(0, 0): a(s)
        a("s_nop 6")
    def setC():
        a(f"v_mov_b32 v{vT}, v{vM}\ns_nop 1\nv_permlane32_swap_b32 v{vT}, v{vM}\ns_nop 1")
        a(f"v_max_f32 v{vM}, v{vM}, v{vT}")
        for r in range(16): a(f"v_sub_f32 v{C+r}, 0, v{vM}")
        a("s_nop 1")
    def tile(u, g2m=False, g2l=False, extra=None):
        cur = S[u & 1]; prv = S[(u & 1) ^ 1]
        ex = extra or {}
        for e in range(16):
            if e == 2: a(smfmac(O, VHI[(u & 1) ^ 1], prv + 8, vIdx))
            if e == 5:
                a("s_waitcnt lgkmcnt(2)")
                a(mfma(prv, KF, Q, C))
                a(f"ds_read_b128 {vr(KF,4)}, v{vK} offset:{(u+2)*2048}")
            if e == 10:
                a("s_waitcnt lgkmcnt(1)")
                a(smfmac(O, VLO, cur, vIdx))
                for s in vread(u + 1, (u & 1) ^ 1): a(s)
            if e == 13:
                ra = RING + u * 8
                if g2m:
                    a(f"s_waitcnt vmcnt({g2m[0]})")
                    a(mfma(GA, ra, ra + 4))
                if g2l:
                    a(f"buffer_load_dwordx4 {vr(ra,4)}, v{vLin}, s[12:15], s{sA} offen offset:{u*1024}")
                    a(f"buffer_load_dwordx4 {vr(ra+4,4)}, v{vLin}, s[12:15], s{sB} offen offset:{u*1024}")
            for s in ex.get(e, []): a(s)
            a(f"v_exp_f32 v{cur+e}, v{cur+e}")
    def block(g2m=None, g2l=False, extra=None):
        for u in range(4):
            tile(u, g2m[u] if g2m else None, g2l, (extra or {}).get(u))
        a(f"v_add_u32 v{vK}, 8192, v{vK}\nv_add_u32 v{vV}, 8192, v{vV}")
        if g2l: a(f"s_add_u32 s{sA}, s{sA}, 4096\ns_add_u32 s{sB}, s{sB}, 4096")
    start(True)
    block()
    a("s_waitcnt vmcnt(8)\ns_barrier")
    block()
    a("s_waitcnt vmcnt(0)\ns_barrier")
    block(g2l=True)
    a(f"s_mov_b32 s{sCNT}, 10")
    a(".p2align 6")
    a.label("K2_LOOP")
    block(g2m=[[6]] * 4, g2l=True)
    a(f"s_sub_u32 s{sCNT}, s{sCNT}, 1\ns_cmp_lg_u32 s{sCNT}, 0\ns_cbranch_scc1 K2_LOOP")
    block(g2m=[[6], [4], [2], None])
    a(f"s_and_b32 s{sT}, s{sW}, 3\ns_lshl_b32 s{sT}, s{sT}, 12\ns_add_u32 s{sT}, s{sT}, {K2_RED}\nv_add_u32 v{vT}, s{sT}, v{vLin}")
    a(f"s_cmp_ge_u32 s{sW}, 4\ns_cbranch_scc1 K2_NOWR")
    for q in range(4): a(f"ds_write_b128 v{vT}, {vr(GA+4*q,4)} offset:{q*1024}")
    a("s_waitcnt lgkmcnt(0)")
    a.label("K2_NOWR")
    block()
    a("s_barrier")
    a(f"s_cmp_lt_u32 s{sW}, 4\ns_cbranch_scc1 K2_NORD")
    for q in range(4): a(f"ds_read_b128 {vr(RING+4*q,4)}, v{vT} offset:{q*1024}")
    a("s_waitcnt lgkmcnt(0)")
    for r in range(0, 16, 2): a(f"v_pk_add_f32 {vr(GA+r,2)}, {vr(GA+r,2)}, {vr(RING+r,2)}")
    for r in range(8): a(f"v_cvt_pk_bf16_f32 v{RING+16+r}, v{GA+2*r}, v{GA+2*r+1}")
    a(f"buffer_store_dwordx4 {vr(RING+16,4)}, v{vLin}, s[12:15], s{sBo} offen")
    a(f"buffer_store_dwordx4 {vr(RING+20,4)}, v{vLin}, s[12:15], s{sBo} offen offset:1024")
    a.label("K2_NORD")
    block()
    def finish():
        a("s_nop 0")
        a(smfmac(O, VHI[1], S[1] + 8, vIdx))
        a("s_nop 11")
    finish()
    a(f"v_mov_b32 v{vT}, 0x4e800000\nv_cmp_nle_f32 vcc, v{O+8}, v{vT}\ns_nop 1\ns_cbranch_vccnz K2_SLOW")
    a.label("K2_FIN")
    a(f"v_rcp_f32 v{vT}, v{O+8}\ns_nop 0")
    for r in range(8): a(f"v_mul_f32 v{O+r}, v{O+r}, v{vT}")
    for r in range(4): a(f"v_cvt_pk_bf16_f32 v{TMP+r}, v{O+2*r}, v{O+2*r+1}")
    a(f"buffer_store_dwordx4 {vr(TMP,4)}, v{vLin}, s[12:15], s{sOo} offen")
    a.label("K2_END")
    a("s_endpgm")
    a.label("K2_SLOW")
    a(f"s_waitcnt lgkmcnt(0)\nv_mov_b32 v{vK}, v{vLin}\nv_mov_b32 v{vM}, 0xff800000\ns_mov_b32 s{sCNT}, 64")
    a.label("K2_SLOW1")
    a(f"ds_read_b128 {vr(KF,4)}, v{vK}\nv_add_u32 v{vK}, 2048, v{vK}\ns_waitcnt lgkmcnt(0)")
    a(mfma(S[0], KF, Q, "0"))
    a("s_nop 11")
    for r in range(0, 16, 2): a(f"v_max3_f32 v{vM}, v{vM}, v{S[0]+r}, v{S[0]+r+1}")
    a(f"s_sub_u32 s{sCNT}, s{sCNT}, 1\ns_cmp_lg_u32 s{sCNT}, 0\ns_cbranch_scc1 K2_SLOW1")
    setC()
    a(f"v_mov_b32 v{vK}, v{vLin}\nv_subrev_u32 v{vV}, {16*8192}, v{vV}")
    init_acc(False)
    a(f"s_mov_b64 exec, s[{sMask}:{sMask+1}]")
    for r in range(4): a(f"v_mov_b32 v{VHI[1]+r}, 0")
    a("s_mov_b64 exec, -1")
    start(False)
    a(f"s_mov_b32 s{sCNT}, 16")
    a.label("K2_SLOW2")
    block()
    a(f"s_sub_u32 s{sCNT}, s{sCNT}, 1\ns_cmp_lg_u32 s{sCNT}, 0\ns_cbranch_scc1 K2_SLOW2")
    finish()
    a("s_branch K2_FIN")
    return a

K3_LDS = 49152
def k3():
    a = Asm()
    ACC = 0; FR = 64; BB = 192; vG = 200; vL = 201; vLin = 202; vT = 203; vT2 = 204; vSt = 205
    sW = 24; sTG = 25; sCG = 26; sT = 27; sT2 = 28; sA0 = 30; sA1 = 31; sB0 = 32; sB1 = 33; sTB = 34; sCB = 35; sO = 36
    a("s_cmp_ge_u32 s2, 256\ns_cbranch_scc1 K3_END")
    a("s_load_dwordx2 s[56:57], s[0:1], 80\ns_load_dwordx2 s[58:59], s[0:1], 64")
    a(f"v_lshrrev_b32 v1, 6, v0\nv_and_b32 v{vL}, 63, v0")
    a(f"v_readfirstlane_b32 s{sW}, v1")
    a(f"s_and_b32 s3, s2, 7\ns_lshr_b32 s{sT}, s2, 3\ns_and_b32 s{sT2}, s{sT}, 3\ns_lshl_b32 s{sTG}, s3, 2\ns_add_u32 s{sTG}, s{sTG}, s{sT2}\ns_lshr_b32 s{sCG}, s{sT}, 2")
    a(f"v_lshlrev_b32 v{vLin}, 4, v{vL}")
    a(f"s_and_b32 s{sT}, s{sW}, 1\ns_lshl_b32 s{sTB}, s{sTG}, 1\ns_add_u32 s{sTB}, s{sTB}, s{sT}")
    a(f"s_lshr_b32 s{sT}, s{sW}, 1\ns_lshl_b32 s{sCB}, s{sCG}, 1\ns_add_u32 s{sCB}, s{sCB}, s{sT}")
    a(f"s_lshl_b32 s{sT}, s{sW}, 13")
    a(f"s_lshl_b32 s{sA0}, s{sCB}, 15\ns_add_u32 s{sA0}, s{sA0}, s{sT}\ns_add_u32 s{sA0}, s{sA0}, {WS_WO}\ns_xor_b32 s{sA1}, s{sA0}, 0x8000")
    a(f"s_lshl_b32 s{sB0}, s{sTB}, 15\ns_add_u32 s{sB0}, s{sB0}, s{sT}\ns_add_u32 s{sB0}, s{sB0}, {WS_OF}\ns_xor_b32 s{sB1}, s{sB0}, 0x8000")
    a("s_waitcnt lgkmcnt(0)")
    srd(a, 12, 56, WS_SIZE)
    for ks in range(8):
        if ks == 4:
            for s in (sA0, sA1, sB0, sB1): a(f"s_add_u32 s{s}, s{s}, 4096")
        for k, s in enumerate((sA0, sB0, sA1, sB1)):
            a(f"buffer_load_dwordx4 {vr(FR+ks*16+4*k,4)}, v{vLin}, s[12:15], s{s} offen offset:{(ks&3)*1024}")
    a(f"s_lshl_b32 s{sT}, s{sTB}, 4\ns_add_u32 s{sT}, s{sT}, s{sCB}\ns_lshl_b32 s{sT}, s{sT}, 11\ns_add_u32 s{sT}, s{sT}, {WS_BF}")
    a(f"buffer_load_dwordx4 {vr(BB,4)}, v{vLin}, s[12:15], s{sT} offen")
    a(f"buffer_load_dwordx4 {vr(BB+4,4)}, v{vLin}, s[12:15], s{sT} offen offset:1024")
    a(f"v_and_b32 v{vT}, 31, v{vL}\nv_lshlrev_b32 v{vT2}, 2, v{vT}\ns_lshl_b32 s{sT}, s{sTB}, 7\ns_add_u32 s{sT}, s{sT}, {WS_G}")
    a(f"buffer_load_dword v{vG}, v{vT2}, s[12:15], s{sT} offen")
    srd(a, 16, 58, 2048 * 1024)
    a(f"v_lshrrev_b32 v{vT2}, 5, v{vL}\nv_lshlrev_b32 v{vT2}, 4, v{vT2}\nv_lshl_add_u32 v{vSt}, v{vT}, 10, v{vT2}")
    a(f"s_lshl_b32 s{sO}, s{sTB}, 15\ns_lshl_b32 s{sT}, s{sCB}, 6\ns_add_u32 s{sO}, s{sO}, s{sT}")
    for ks in range(8):
        f = FR + ks * 16
        A0, B0, A1, B1 = f, f + 4, f + 8, f + 12
        rem = (7 - ks) * 4 + 3
        c = (lambda i: "0") if ks == 0 else (lambda i: None)
        a(f"s_waitcnt vmcnt({rem+2})")
        a(mfma(ACC, A0, B0, c(0)))
        a(f"s_waitcnt vmcnt({rem+1})")
        a(mfma(ACC + 32, A1, B0, c(2)))
        a(f"s_waitcnt vmcnt({rem})")
        a(mfma(ACC + 16, A0, B1, c(1)))
        a(mfma(ACC + 48, A1, B1, c(3)))
    for k in range(1, 4):
        a(f"s_xor_b32 s{sT}, s{sW}, {k}\ns_mul_i32 s{sT}, s{sT}, 12288\ns_add_u32 s{sT}, s{sT}, {(k-1)*4096}\nv_add_u32 v{FR+k}, s{sT}, v{vLin}")
    a(f"s_mul_i32 s{sT}, s{sW}, 12288\nv_add_u32 v{FR}, s{sT}, v{vLin}")
    a("s_nop 4")
    for k in (2, 1, 3):
        if k == 3: a("s_nop 3")
        for q in range(4): a(f"ds_write_b128 v{FR+k}, {vr(ACC+16*k+4*q,4)} offset:{q*1024}")
    a("s_waitcnt lgkmcnt(0)\ns_barrier")
    R = FR + 16
    for k in range(3):
        for q in range(4): a(f"ds_read_b128 {vr(R+16*k+4*q,4)}, v{FR} offset:{k*4096+q*1024}")
    a("s_waitcnt vmcnt(0)")
    Bf = R + 48
    for r in range(8):
        a(f"v_lshlrev_b32 v{Bf+2*r}, 16, v{BB+r}\nv_and_b32 v{Bf+2*r+1}, 0xffff0000, v{BB+r}")
    GP = Bf + 16
    a(f"v_mov_b32 v{GP}, v{vG}\nv_mov_b32 v{GP+1}, v{vG}")
    for r in range(0, 16, 2): a(f"v_pk_add_f32 {vr(ACC+r,2)}, {vr(ACC+r,2)}, {vr(Bf+r,2)} neg_lo:[0,1] neg_hi:[0,1]")
    for k in range(3):
        a(f"s_waitcnt lgkmcnt({8-4*k})")
        for r in range(0, 16, 2): a(f"v_pk_add_f32 {vr(ACC+r,2)}, {vr(ACC+r,2)}, {vr(R+16*k+r,2)}")
    for r in range(0, 16, 2): a(f"v_pk_fma_f32 {vr(ACC+r,2)}, {vr(ACC+r,2)}, {vr(GP,2)}, {vr(Bf+r,2)}")
    P = 16
    for r in range(8): a(f"v_cvt_pk_bf16_f32 v{P+r}, v{ACC+2*r}, v{ACC+2*r+1}")
    a("s_nop 1")
    for b in (0, 4):
        a(f"v_permlane32_swap_b32 v{P+b}, v{P+b+2}\nv_permlane32_swap_b32 v{P+b+1}, v{P+b+3}")
    a(f"buffer_store_dwordx4 {vr(P,4)}, v{vSt}, s[16:19], s{sO} offen")
    a(f"buffer_store_dwordx4 {vr(P+4,4)}, v{vSt}, s[16:19], s{sO} offen offset:32")
    a.label("K3_END")
    a("s_endpgm")
    return a

def kernel(name, asm, nv, ns=96):
    acc = (nv + 3) // 4 * 4
    t = f".text\n.globl {name}\n.p2align 8\n.type {name},@function\n{name}:\n" + asm.text()
    d = f""".p2align 6
.amdhsa_kernel {name}
  .amdhsa_next_free_vgpr {nv}
  .amdhsa_next_free_sgpr {ns}
  .amdhsa_accum_offset {acc}
  .amdhsa_group_segment_fixed_size 0
  .amdhsa_kernarg_size 88
  .amdhsa_user_sgpr_count 2
  .amdhsa_user_sgpr_kernarg_segment_ptr 1
  .amdhsa_system_sgpr_workgroup_id_x 1
.end_amdhsa_kernel
"""
    return t, d

def build():
    ks = [("k1_kernel", k1(), 248, 256, K1_LDS), ("k2_kernel", k2(), 144, 512, K2_LDS), (NAME + "_kernel", k3(), 208, 256, K3_LDS)]
    hdr = "".join(l for l in open(f"cdna_kernels/{NAME}.s.ref").readlines() if l.startswith(";") and "@launch" not in l and not l.strip().startswith("; v1") )
    hdr = "".join(l for l in hdr.splitlines(True) if l.startswith("; Kernarg") or l.startswith(";   offset"))
    for n, a, nv, blk, lds in ks:
        hdr += f"; @launch kernel={n} grid=(256,1,1) block=({blk},1,1) lds={lds}\n"
    out = hdr + '.amdgcn_target "amdgcn-amd-amdhsa--gfx950"\n'
    descs = '.section .rodata,"a"\n'
    for n, a, nv, blk, lds in ks:
        errs = check(a.L)
        for e in errs: print(n, e)
        t, d = kernel(n, a, nv)
        out += t; descs += d
    return out + descs
if __name__ == "__main__":
    dst = sys.argv[1] if len(sys.argv) > 1 else f"cdna_kernels/{NAME}.s"
    open(dst, "w").write(build())
    print("wrote", dst)
```
